```python
import torch

def _softmax(x, axis=-1):
    return torch.softmax(x, dim=axis)
def _gelu(x):
    return torch.nn.functional.gelu(x, approximate="tanh")
def _silu(x):
    return torch.nn.functional.silu(x)
def _sigmoid(x):
    return torch.sigmoid(x)
def _layernorm(x, axis=-1, eps=1e-5):
    m = x.mean(dim=axis, keepdim=True)
    v = x.var(dim=axis, keepdim=True, unbiased=False)
    return (x - m) / torch.sqrt(v + eps)
def _scatter_add(tgt, idx, src, axis=0):
    return tgt.clone().index_add_(axis, idx, src)
def _segment_sum(src, seg, n):
    out = torch.zeros((n,) + src.shape[1:], dtype=src.dtype)
    return out.index_add_(0, seg, src)
def _pad(x, pw):
    flat = tuple(v for pair in reversed(pw) for v in pair)
    return torch.nn.functional.pad(x, flat)

kernel_name = 'parallel_sum__linear_kernel_hedgehog__dense_activation_relu__prompt'

def setup_inputs():

    _w = (lambda a: (lambda t: t.to(torch.bfloat16) if t.is_floating_point() else t)(torch.as_tensor(a)))
    def _A_setup():
        B, S, D, H = 1, 2048, 640, 32
        Dh = D // H
        return {
            "x": _w((lambda *s: torch.randn(*s, dtype=torch.bfloat16) * 0.05)(B, S, D)),
            "wqkv": _w((lambda *s: torch.randn(*s, dtype=torch.bfloat16) * 0.4)(D, 3 * D)),
            "w_phi": _w((lambda *s: torch.randn(*s, dtype=torch.bfloat16) * 0.4)(H, Dh, Dh) * (Dh ** -0.5)),
            "wo": _w((lambda *s: torch.randn(*s, dtype=torch.bfloat16) * 0.1)(D, D)),
        }
    _A_in = _A_setup()

    def _B_setup():
        B, S, D, Dff = 1, 2048, 640, 1728
        return {
            "x": _w((lambda *s: torch.randn(*s, dtype=torch.bfloat16) * 0.05)(B, S, D)),
            "w1": _w((lambda *s: torch.randn(*s, dtype=torch.bfloat16) * 0.05)(D, Dff)),
            "w2": _w((lambda *s: torch.randn(*s, dtype=torch.bfloat16) * 0.05)(Dff, D)),
        }
    _B_in = _B_setup()

    return {
        "A_x": _A_in["x"],
        "A_wqkv": _A_in["wqkv"],
        "A_w_phi": _A_in["w_phi"],
        "A_wo": _A_in["wo"],
        "B_x": _B_in["x"],
        "B_w1": _B_in["w1"],
        "B_w2": _B_in["w2"],
    }

def reference(A_x, A_wqkv, A_w_phi, A_wo, B_x, B_w1, B_w2):
    def _A_ref(x, wqkv, w_phi, wo):
        B, S, D = x.shape
        H = 32; Dh = D // H
        qkv = (lambda x, *d: x.permute(*d))((x @ wqkv).reshape(B, S, 3, H, Dh), 2, 0, 3, 1, 4)
        q, k, v = qkv[0], qkv[1], qkv[2]
        pq = torch.einsum("bhsd,hdf->bhsf", q, w_phi)
        pk = torch.einsum("bhsd,hdf->bhsf", k, w_phi)
        phi_q = torch.concatenate([_softmax(pq, axis=-1), _softmax(-pq, axis=-1)], axis=-1)
        phi_k = torch.concatenate([_softmax(pk, axis=-1), _softmax(-pk, axis=-1)], axis=-1)
        kv = torch.einsum("bhsf,bhsd->bhfd", phi_k, v)
        z  = torch.einsum("bhsf->bhf", phi_k)
        num = torch.einsum("bhqf,bhfd->bhqd", phi_q, kv)
        den = torch.einsum("bhqf,bhf->bhq", phi_q, z)[..., None] + 1e-6
        o = num / den
        return (lambda x, *d: x.permute(*d))(o, 0, 2, 1, 3).reshape(B, S, D) @ wo

    def _B_ref(x, w1, w2):
        h = torch.einsum("bsd,df->bsf", x, w1)
        zero = torch.zeros_like(h)
        h = torch.maximum(h, zero)
        return torch.einsum("bsf,fd->bsd", h, w2)

    x = A_x
    xn = _layernorm(x, axis=-1)
    return x + _A_ref(xn, A_wqkv, A_w_phi, A_wo) + _B_ref(xn, B_w1, B_w2)
```

```python
class G:
    def __init__(self):
        self.L = []
        self.nlab = 0
    def e(self, s):
        for ln in s.split("\n"):
            self.L.append("    " + ln.strip())
    def c(self, s):
        self.L.append("    ; " + s)
    def lab(self, s):
        self.L.append(s + ":")
    def newlab(self, p="L"):
        self.nlab += 1
        return f"{p}_{self.nlab}"
    def text(self):
        return "\n".join(self.L) + "\n"

def vr(b, n=1):
    return f"v{b}" if n == 1 else f"v[{b}:{b+n-1}]"
def ar(b, n=1):
    return f"a{b}" if n == 1 else f"a[{b}:{b+n-1}]"
def sr(b, n=1):
    return f"s{b}" if n == 1 else f"s[{b}:{b+n-1}]"

def magic(d, maxv):
    for sh in range(8, 28):
        m = (1 << sh) // d + 1
        if m >= (1 << 24) or m * maxv >= (1 << 32):
            continue
        if all(((v * m) >> sh) == v // d for v in range(maxv + 1)):
            return m, sh
    raise ValueError

def vdiv(g, dst, src, d, maxv):
    m, sh = magic(d, maxv)
    g.e(f"v_mul_u32_u24 v{dst}, {m}, v{src}" if m > 64 else f"v_mul_u32_u24 v{dst}, {m}, v{src}")
    g.e(f"v_lshrrev_b32 v{dst}, {sh}, v{dst}")

def sdiv(g, dst, src, d, maxv):
    m, sh = magic(d, maxv)
    g.e(f"s_mul_i32 s{dst}, s{src}, {m}")
    g.e(f"s_lshr_b32 s{dst}, s{dst}, {sh}")

def srd(g, dst, lo, hi, size):
    g.e(f"s_mov_b32 s{dst}, s{lo}")
    g.e(f"s_mov_b32 s{dst+1}, s{hi}")
    g.e(f"s_mov_b32 s{dst+2}, {size}")
    g.e(f"s_mov_b32 s{dst+3}, 0x20000")

def interleave(g, mains, fillers, per=2, lead=0):
    fl = list(fillers)
    n = len(mains)
    for idx, m in enumerate(mains):
        g.e(m)
        if idx < lead:
            continue
        rem = n - idx
        k = -(-len(fl) // rem) if fl else 0
        k = min(k, per) if rem > 1 else len(fl)
        for _ in range(k):
            if fl:
                f = fl.pop(0)
                g.e(f if isinstance(f, str) else "\n".join(f))
    for f in fl:
        g.e(f if isinstance(f, str) else "\n".join(f))

S, D, H, DH, FF = 2048, 640, 32, 20, 1728
NKF = 54
NKO = 24
NK2 = NKF + NKO
WS_HF = 0
WS_QB = WS_HF + 32 * NKF * 4096
WS_KVP = WS_QB + H * S * 40
KVP_STRIDE = 3584
WS_WT = WS_KVP + 16 * H * KVP_STRIDE
WS_OF = WS_WT + 8 * NK2 * 5 * 1024
WS_END = WS_OF + 32 * NKO * 4096
WS_SIZE = 268435456
assert all(v % 128 == 0 for v in (WS_QB, WS_KVP, WS_WT, WS_OF))

def kd(name, vgpr, sgpr, accum):
    return f""".p2align 6
.amdhsa_kernel {name}
  .amdhsa_next_free_vgpr {vgpr}
  .amdhsa_next_free_sgpr {sgpr}
  .amdhsa_accum_offset {accum}
  .amdhsa_group_segment_fixed_size 0
  .amdhsa_kernarg_size 80
  .amdhsa_user_sgpr_count 2
  .amdhsa_user_sgpr_kernarg_segment_ptr 1
  .amdhsa_system_sgpr_workgroup_id_x 1
.end_amdhsa_kernel
"""
```

```python
from gen_common import *

WRING = 0
XRING = 98304
MISC = 147456
STATS = MISC
CSP = MISC + 1024
WPHI = MISC + 3584
ZERO = MISC + 7680
KST = 0
VST = 26624
PHIS = 53248
JOBL = 32768
LDS1 = 163840
OOB = 0x7ffffff0

P_X, P_WQKV, P_WPHI, P_WO, P_W1, P_W2, P_WS = 8, 10, 12, 14, 16, 18, 20
SRD_X, SRD_W, SRD_WS, SRD_J, SRD_PHI = 24, 28, 32, 36, 40
sW, sRB, sIDX, sTYPE, sRH, sC = 44, 45, 46, 47, 48, 49
sT, sWSO, sWSTEP, sWM0, sWSL, sXSO, sXM0, sXSL = 50, 51, 52, 53, 54, 55, 56, 57
sWD, sWRS, sXRS, sXD, sONE = 58, 59, 60, 61, 62
sT0, sT1, sT2, sT3, sT4 = 63, 64, 65, 66, 67
sUNIT, sJOB, sTAIL = 70, 71, 72
vLANE, vG, vS = 1, 2, 3
AX = [10, 11, 12, 13]
AWA, AWB = 14, 15
DX = [16, 17]
DW = [18, 19]
SX, SXX = 20, 21
CS = [22, 23, 24, 25, 26]
XF = [32, 48]
WF = [64, 84]
ACC = 104
def acc(j, i): return ACC + (j * 4 + i) * 4
TMP = 184

def red4(g, v, t):
    g.e(f"v_mov_b32 v{t}, v{v}")
    g.e("s_nop 1")
    g.e(f"v_permlane16_swap_b32 v{t}, v{v}")
    g.e("s_nop 1")
    g.e(f"v_add_f32 v{v}, v{v}, v{t}")
    g.e(f"v_mov_b32 v{t}, v{v}")
    g.e("s_nop 1")
    g.e(f"v_permlane32_swap_b32 v{t}, v{v}")
    g.e("s_nop 1")
    g.e(f"v_add_f32 v{v}, v{v}, v{t}")

def bf16r(g, v, t):
    g.e(f"v_cvt_pk_bf16_f32 v{t}, v{v}, v{v}")
    g.e(f"v_lshlrev_b32 v{v}, 16, v{t}")

def wreads(role, st):
    out = []
    T = {'P4': 4, 'P2': 2, 'K5': 5}[role]
    for j in range(T):
        r = WF[st] + 4 * j
        if role == 'K5':
            for hh in range(2):
                out.append(f"ds_read_b64_tr_b16 v[{r+2*hh}:{r+2*hh+1}], v{AWA} offset:{hh*640 + 8*j}")
        else:
            kp, var = j >> 1, j & 1
            a = AWB if var else AWA
            for hh in range(2):
                out.append(f"ds_read_b64_tr_b16 v[{r+2*hh}:{r+2*hh+1}], v{a} offset:{kp*512 + hh*256}")
    return out

def xreads(st, kp):
    return [f"ds_read_b128 v[{XF[st]+4*i}:{XF[st]+4*i+3}], v{AX[i]} offset:{kp*512}" for i in range(4)]

def dma_w(g):
    g.e(f"s_mov_b32 m0, s{sWM0}")
    g.e(f"s_add_u32 s{sT0}, s{sWM0}, 1024")
    g.e(f"buffer_load_dwordx4 v{DW[0]}, s[{SRD_W}:{SRD_W+3}], s{sWSO} offen lds")
    g.e(f"s_mov_b32 m0, s{sT0}")
    g.e("s_nop 0")
    g.e(f"buffer_load_dwordx4 v{DW[1]}, s[{SRD_W}:{SRD_W+3}], s{sWSO} offen lds")
    g.e(f"s_add_u32 s{sWSO}, s{sWSO}, s{sWSTEP}")
    g.e(f"s_add_u32 s{sWSL}, s{sWSL}, 1")
    g.e(f"s_cmp_eq_u32 s{sWSL}, 6")
    g.e(f"s_cselect_b32 s{sT0}, s74, s73")
    g.e(f"s_cselect_b32 s{sWSL}, 0, s{sWSL}")
    g.e(f"s_add_u32 s{sWM0}, s{sWM0}, s{sT0}")

def dma_x(g, e):
    if e:
        g.e(f"s_add_u32 s{sT0}, s{sXM0}, 1024")
        g.e(f"s_mov_b32 m0, s{sT0}")
    else:
        g.e(f"s_mov_b32 m0, s{sXM0}")
    g.e("s_nop 0")
    g.e(f"buffer_load_dwordx4 v{DX[e]}, s[{SRD_X}:{SRD_X+3}], s{sXSO} offen lds")
    if e:
        g.e(f"s_add_u32 s{sXSO}, s{sXSO}, 128")
        g.e(f"s_add_u32 s{sXSL}, s{sXSL}, 1")
        g.e(f"s_cmp_eq_u32 s{sXSL}, 3")
        g.e(f"s_cselect_b32 s{sT0}, s75, s73")
        g.e(f"s_cselect_b32 s{sXSL}, 0, s{sXSL}")
        g.e(f"s_add_u32 s{sXM0}, s{sXM0}, s{sT0}")

def job_dma(g):
    g.e(f"s_mul_i32 s{sT0}, s{sW}, 5120")
    g.e(f"s_add_u32 s{sT0}, s{sT0}, {JOBL}")
    for i in range(5):
        g.e(f"s_mov_b32 m0, s{sT0}")
        g.e(f"s_add_u32 s{sT0}, s{sT0}, 1024")
        g.e(f"buffer_load_dwordx4 v{27+i}, s[{SRD_J}:{SRD_J+3}], 0 offen lds")

def loop_body(g, role, par, name):
    T = {'P4': 4, 'P2': 2, 'K5': 5}[role]
    g.lab(name)
    g.e(f"s_sub_u32 s{sTAIL}, s{sT}, 14")
    for e in range(2):
        cur, nxt = e, 1 - e
        l1 = g.newlab("Lw")
        g.e(f"s_cmp_lt_u32 s{sTAIL}, 4")
        g.e(f"s_cbranch_scc0 {l1}")
        g.e("s_waitcnt vmcnt(0)")
        g.lab(l1)
        g.e(f"s_waitcnt vmcnt({9 if e == 0 else 6}) lgkmcnt(0)")
        g.e("s_barrier")
        pre = []
        pre.append(f"s_add_u32 s{sWRS}, s{sWRS}, 1")
        pre.append(f"s_cmp_eq_u32 s{sWRS}, 6")
        pre.append(f"s_cselect_b32 s{sWD}, s74, s73")
        pre.append(f"s_cselect_b32 s{sWRS}, 0, s{sWRS}")
        if e == 1:
            pre.append(f"s_add_u32 s{sXRS}, s{sXRS}, 1")
            pre.append(f"s_cmp_eq_u32 s{sXRS}, 3")
            pre.append(f"s_cselect_b32 s{sXD}, s75, s73")
            pre.append(f"s_cselect_b32 s{sXRS}, 0, s{sXRS}")
        for p in pre: g.e(p)
        mf = []
        for j in range(T):
            for i in range(4):
                a = WF[cur] + 4 * j; b = XF[cur] + 4 * i; c = acc(j, i)
                mf.append(f"v_mfma_f32_16x16x32_bf16 v[{c}:{c+3}], v[{a}:{a+3}], v[{b}:{b+3}], v[{c}:{c+3}]")
        fl = []
        fl.append(f"v_add_u32 v{AWA}, s{sWD}, v{AWA}")
        if role != 'K5':
            fl.append(f"v_add_u32 v{AWB}, s{sWD}, v{AWB}")
        if e == 1:
            for i in range(4): fl.append(f"v_add_u32 v{AX[i]}, s{sXD}, v{AX[i]}")
        fl += xreads(nxt, 1 - e)
        fl += wreads(role, nxt)
        for k in range(4):
            fl.append(f"v_dot2c_f32_bf16 v{SX}, s{sONE}, v{XF[cur]+k}")
            fl.append(f"v_dot2c_f32_bf16 v{SXX}, v{XF[cur]+k}, v{XF[cur]+k}")
        if e == par:
            for k in range(4):
                for j in range(T):
                    fl.append(f"v_dot2c_f32_bf16 v{CS[j]}, s{sONE}, v{WF[cur]+4*j+k}")
        nlead = 2
        for m in mf[:nlead]: g.e(m)
        l2 = g.newlab("Ld"); l3 = g.newlab("Ld")
        if e == 0:
            g.e(f"s_cmp_le_u32 s{sT}, 12")
            g.e(f"s_cbranch_scc0 {l2}")
            dma_w(g)
            g.lab(l2)
            g.e(f"s_cmp_le_u32 s{sT}, 14")
            g.e(f"s_cbranch_scc0 {l3}")
            dma_x(g, 1)
            g.lab(l3)
        else:
            g.e(f"s_cmp_le_u32 s{sT}, 12")
            g.e(f"s_cbranch_scc0 {l2}")
            dma_w(g)
            dma_x(g, 0)
            g.lab(l2)
            if role == 'P4':
                g.e(f"s_cmp_eq_u32 s{sT}, 16")
                g.e(f"s_cbranch_scc0 {l3}")
                g.e(f"s_cmp_lt_u32 s{sJOB}, {NK2}")
                g.e(f"s_cbranch_scc0 {l3}")
                job_dma(g)
                g.lab(l3)
        interleave(g, mf[nlead:], fl, per=3)
    g.e(f"s_add_u32 s{sT}, s{sT}, 2")
    g.e(f"s_cmp_lt_u32 s{sT}, 20")
    g.e(f"s_cbranch_scc1 {name}")

def stats_cs_exchange(g, T):
    g.e("s_nop 7")
    g.e("s_nop 3")
    t = TMP + 40
    red4(g, SX, t); red4(g, SXX, t)
    g.e(f"v_mul_f32 v{SX}, s{sT4}, v{SX}")
    g.e(f"v_mul_f32 v{SXX}, s{sT4}, v{SXX}")
    g.e(f"v_fma_f32 v{SXX}, -v{SX}, v{SX}, v{SXX}")
    g.e(f"v_max_f32 v{SXX}, 0, v{SXX}")
    bf16r(g, SX, t)
    bf16r(g, SXX, t)
    g.e(f"v_add_f32 v{SXX}, 0x3727c5ac, v{SXX}")
    bf16r(g, SXX, t)
    g.e(f"v_sqrt_f32 v{SXX}, v{SXX}")
    g.e("s_nop 0")
    bf16r(g, SXX, t)
    g.e(f"v_rcp_f32 v{t}, v{SXX}")
    g.e("s_nop 0")
    g.e(f"v_mul_f32 v{t+1}, v{SX}, v{t}")
    g.e(f"v_sub_f32 v{t+1}, 0, v{t+1}")
    g.e(f"s_lshl_b32 s{sT0}, s{sRH}, 9")
    g.e(f"s_lshl_b32 s{sT1}, s{sC}, 7")
    g.e(f"s_add_u32 s{sT0}, s{sT0}, s{sT1}")
    g.e(f"s_add_u32 s{sT0}, s{sT0}, {STATS}")
    g.e(f"v_lshl_add_u32 v{t+2}, v{vS}, 3, s{sT0}")
    g.e(f"ds_write_b64 v{t+2}, v[{t}:{t+1}]")
    g.e(f"s_lshl_b32 s{sT0}, s{sRH}, 2")
    g.e(f"s_add_u32 s{sT0}, s{sT0}, s{sC}")
    g.e(f"s_mul_i32 s{sT0}, s{sT0}, 320")
    g.e(f"s_add_u32 s{sT0}, s{sT0}, {CSP}")
    g.e(f"v_lshl_add_u32 v{t+3}, v{vS}, 2, s{sT0}")
    for j in range(T):
        red4(g, CS[j], t + 4)
        g.e(f"ds_write_b32 v{t+3}, v{CS[j]} offset:{j*64}")
    g.e("s_waitcnt vmcnt(0) lgkmcnt(0)")
    g.e("s_barrier")
    g.e(f"s_lshl_b32 s{sT0}, s{sRH}, 9")
    g.e(f"s_add_u32 s{sT0}, s{sT0}, {STATS}")
    g.e(f"v_lshl_add_u32 v{t+2}, v{vS}, 3, s{sT0}")
    for i in range(4):
        g.e(f"s_add_u32 s{sT1}, s{sC}, {i}")
        g.e(f"s_and_b32 s{sT1}, s{sT1}, 3")
        g.e(f"s_lshl_b32 s{sT1}, s{sT1}, 7")
        g.e(f"v_add_u32 v{t+4}, s{sT1}, v{t+2}")
        g.e(f"ds_read_b64 v[{TMP+2*i}:{TMP+2*i+1}], v{t+4}")
    g.e(f"s_mul_i32 s{sT0}, s{sC}, 320")
    g.e(f"s_add_u32 s{sT0}, s{sT0}, {CSP}")
    g.e(f"v_lshl_add_u32 v{t+3}, v{vG}, 4, s{sT0}")
    for j in range(T):
        g.e(f"ds_read_b128 v[{TMP+8+4*j}:{TMP+8+4*j+3}], v{t+3} offset:{j*64}")
        g.e(f"ds_read_b128 v[{XF[0]+4*j}:{XF[0]+4*j+3}], v{t+3} offset:{j*64+1280}")
    g.e("s_waitcnt lgkmcnt(0)")
    for j in range(T):
        for k in (0, 2):
            a = TMP + 8 + 4 * j + k; b = XF[0] + 4 * j + k
            g.e(f"v_pk_add_f32 v[{a}:{a+1}], v[{a}:{a+1}], v[{b}:{b+1}]")

def normalize(g, j, i, t):
    a = acc(j, i); rn = TMP + 2 * i; cs = TMP + 8 + 4 * j
    for k in (0, 2):
        g.e(f"v_pk_mul_f32 v[{t}:{t+1}], v[{cs+k}:{cs+k+1}], v[{rn}:{rn+1}] op_sel:[0,1] op_sel_hi:[1,1]")
        g.e(f"v_pk_fma_f32 v[{a+k}:{a+k+1}], v[{a+k}:{a+k+1}], v[{rn}:{rn+1}], v[{t}:{t+1}] op_sel:[0,0,0] op_sel_hi:[1,0,1]")

def q_store(g, tiles, kp_base_expr):
    t = TMP + 40
    for (j, kp, var) in tiles:
        g.e(f"s_lshl_b32 s{sT0}, s{sUNIT}, 6")
        if kp_base_expr is None:
            g.e(f"s_add_u32 s{sT0}, s{sT0}, {32*kp}")
        else:
            g.e(f"s_add_u32 s{sT0}, s{sT0}, s{kp_base_expr}")
        g.e(f"v_and_b32 v{t}, 1, v{vG}")
        if var: g.e(f"v_xor_b32 v{t}, 1, v{t}")
        g.e(f"v_lshlrev_b32 v{t}, 2, v{t}")
        g.e(f"v_lshl_add_u32 v{t}, v{vG}, 3, v{t}")
        g.e(f"v_add_u32 v{t}, s{sT0}, v{t}")
        vdiv(g, t + 1, t, 20, 640)
        g.e(f"v_mul_u32_u24 v{t+2}, 20, v{t+1}")
        g.e(f"v_sub_u32 v{t+2}, v{t}, v{t+2}")
        g.e(f"v_mul_u32_u24 v{t+1}, {2048*40}, v{t+1}")
        g.e(f"v_lshl_add_u32 v{t+1}, v{t+2}, 1, v{t+1}")
        g.e(f"v_mul_u32_u24 v{t+2}, 40, v{vS}")
        g.e(f"v_add_u32 v{t+1}, v{t+1}, v{t+2}")
        for i in range(4):
            normalize(g, j, i, t + 4)
            a = acc(j, i)
            g.e(f"v_cvt_pk_bf16_f32 v{t+6}, v{a}, v{a+1}")
            g.e(f"v_cvt_pk_bf16_f32 v{t+7}, v{a+2}, v{a+3}")
            g.e(f"s_add_u32 s{sT1}, s{sC}, {i}")
            g.e(f"s_and_b32 s{sT1}, s{sT1}, 3")
            g.e(f"s_lshl_b32 s{sT1}, s{sT1}, 4")
            g.e(f"s_lshl_b32 s{sT2}, s{sRB}, 7")
            g.e(f"s_add_u32 s{sT1}, s{sT1}, s{sT2}")
            g.e(f"s_lshl_b32 s{sT2}, s{sRH}, 6")
            g.e(f"s_add_u32 s{sT1}, s{sT1}, s{sT2}")
            g.e(f"s_mul_i32 s{sT1}, s{sT1}, 40")
            g.e(f"s_add_u32 s{sT1}, s{sT1}, {WS_QB}")
            g.e(f"buffer_store_dwordx2 v[{t+6}:{t+7}], v{t+1}, s[{SRD_WS}:{SRD_WS+3}], s{sT1} offen")
            g.e("s_nop 0")

def gen_k1(name="hh1_kernel"):
    g = G()
    e = g.e
    g.L.append(f".globl {name}\n.p2align 8\n.type {name},@function\n{name}:")
    e("s_cmp_ge_u32 s2, 256")
    e("s_cbranch_scc1 K1_END")
    e("s_load_dwordx8 s[8:15], s[0:1], 0")
    e("s_load_dwordx4 s[16:19], s[0:1], 40")
    e("s_load_dwordx2 s[20:21], s[0:1], 72")
    e(f"v_and_b32 v{vLANE}, 63, v0")
    e("v_lshrrev_b32 v4, 6, v0")
    e(f"v_lshrrev_b32 v{vG}, 4, v{vLANE}")
    e(f"v_readfirstlane_b32 s{sW}, v4")
    e(f"v_and_b32 v{vS}, 15, v{vLANE}")
    for r in range(27, 32): e(f"v_mov_b32 v{r}, {OOB}")
    e(f"s_and_b32 s{sT0}, s2, 7")
    e(f"s_lshr_b32 s{sT1}, s2, 3")
    e(f"s_lshr_b32 s{sT2}, s{sT0}, 2")
    e(f"s_and_b32 s{sT3}, s{sT0}, 3")
    e(f"s_lshl_b32 s{sRB}, s{sT2}, 3")
    e(f"s_and_b32 s{sT2}, s{sT1}, 7")
    e(f"s_add_u32 s{sRB}, s{sRB}, s{sT2}")
    e(f"s_lshl_b32 s{sT3}, s{sT3}, 2")
    e(f"s_lshr_b32 s{sT1}, s{sT1}, 3")
    e(f"s_add_u32 s{sT3}, s{sT3}, s{sT1}")
    e(f"s_and_b32 s{sTYPE}, s{sT3}, 1")
    e(f"s_lshr_b32 s{sIDX}, s{sT3}, 1")
    e(f"s_mov_b32 s{sONE}, 0x3f803f80")
    e("s_mov_b32 s73, 16384")
    e(f"s_mov_b32 s74, {-5*16384 & 0xffffffff}")
    e(f"s_mov_b32 s75, {-2*16384 & 0xffffffff}")
    e(f"s_mov_b32 s{sT4}, 0x3acccccd")
    e(f"s_cmp_eq_u32 s{sTYPE}, 0")
    e("s_cbranch_scc1 K1_ROLE_KV")
    e(f"s_lshr_b32 s{sRH}, s{sW}, 2")
    e(f"s_and_b32 s{sC}, s{sW}, 3")
    e("s_branch K1_ROLE_DONE")
    g.lab("K1_ROLE_KV")
    e(f"s_and_b32 s{sT0}, s{sW}, 3")
    e(f"s_lshr_b32 s{sRH}, s{sT0}, 1")
    e(f"s_and_b32 s{sC}, s{sW}, 1")
    e(f"s_lshr_b32 s{sT0}, s{sW}, 2")
    e(f"s_lshl_b32 s{sT0}, s{sT0}, 1")
    e(f"s_add_u32 s{sC}, s{sC}, s{sT0}")
    g.lab("K1_ROLE_DONE")
    e("s_waitcnt lgkmcnt(0)")
    srd(g, SRD_X, P_X, P_X + 1, S * D * 2)
    srd(g, SRD_WS, P_WS, P_WS + 1, WS_END)
    srd(g, SRD_J, P_W2, P_W2 + 1, FF * D * 2)
    srd(g, SRD_PHI, P_WPHI, P_WPHI + 1, 3200)
    e(f"v_lshrrev_b32 v4, 5, v{vLANE}")
    e(f"v_bfe_u32 v5, v{vLANE}, 2, 3")
    e(f"v_and_b32 v6, 3, v{vLANE}")
    e(f"s_lshl_b32 s{sT0}, s{sRB}, 7")
    e(f"s_lshl_b32 s{sT1}, s{sW}, 4")
    e(f"s_add_u32 s{sT0}, s{sT0}, s{sT1}")
    for ee in range(2):
        e(f"v_lshrrev_b32 v7, 2, v5")
        e(f"v_add_u32 v7, {2*ee}, v7")
        e(f"v_sub_u32 v7, 4, v7")
        e(f"v_and_b32 v7, 3, v7")
        e(f"v_xor_b32 v7, v6, v7")
        e(f"v_lshl_add_u32 v7, v4, 2, v7")
        e(f"v_add_u32 v8, s{sT0}, v5")
        e(f"v_add_u32 v8, {8*ee}, v8")
        e(f"v_mul_u32_u24 v8, 1280, v8")
        e(f"v_lshl_add_u32 v{DX[ee]}, v7, 4, v8")
    e(f"s_lshl_b32 s{sXM0}, s{sW}, 11")
    e(f"s_add_u32 s{sXM0}, s{sXM0}, {XRING}")
    e(f"s_mov_b32 s{sXSO}, 0")
    e(f"s_mov_b32 s{sXSL}, 0")
    e(f"s_cmp_eq_u32 s{sTYPE}, 0")
    e("s_cbranch_scc0 K1_NOPHI")
    e(f"s_cmp_lt_u32 s{sW}, 4")
    e("s_cbranch_scc0 K1_NOPHI")
    e(f"s_mul_i32 s{sT0}, s{sIDX}, 3200")
    e(f"s_add_u32 s{SRD_PHI}, s{P_WPHI}, s{sT0}")
    e(f"s_addc_u32 s{SRD_PHI+1}, s{P_WPHI+1}, 0")
    e(f"s_mov_b32 s{SRD_PHI+2}, 3200")
    e(f"s_mov_b32 s{SRD_PHI+3}, 0x20000")
    e(f"s_lshl_b32 s{sT0}, s{sW}, 10")
    e(f"v_lshlrev_b32 v7, 4, v{vLANE}")
    e(f"v_add_u32 v7, s{sT0}, v7")
    e(f"s_add_u32 s{sT0}, s{sT0}, {WPHI}")
    e(f"s_mov_b32 m0, s{sT0}")
    e("s_nop 0")
    e(f"buffer_load_dwordx4 v7, s[{SRD_PHI}:{SRD_PHI+3}], 0 offen lds")
    g.lab("K1_NOPHI")
    dma_x(g, 0); dma_x(g, 1)
    e(f"s_cmp_eq_u32 s{sTYPE}, 0")
    e("s_cbranch_scc1 K1_WKV")
    e(f"s_lshl_b32 s{sT0}, s{sIDX}, 2")
    e(f"s_lshr_b32 s{sT1}, s{sW}, 1")
    e(f"s_add_u32 s{sT0}, s{sT0}, s{sT1}")
    e(f"s_add_u32 s{sT0}, s{sT0}, 8")
    e(f"s_lshl_b32 s{sWM0}, s{sT1}, 12")
    e(f"s_and_b32 s{sT1}, s{sW}, 1")
    e(f"s_lshl_b32 s{sT2}, s{sT1}, 11")
    e(f"s_add_u32 s{sWM0}, s{sWM0}, s{sT2}")
    e(f"s_lshl_b32 s{sT1}, s{sT1}, 1")
    e(f"s_lshl_b32 s{sUNIT}, s{sIDX}, 2")
    e(f"s_add_u32 s{sUNIT}, s{sUNIT}, s{sC}")
    e(f"s_add_u32 s{sUNIT}, s{sUNIT}, 8")
    e(f"s_lshl_b32 s{sJOB}, s{sIDX}, 4")
    e(f"s_add_u32 s{sJOB}, s{sJOB}, s{sRB}")
    e("s_branch K1_WPLAIN")
    g.lab("K1_WKV")
    e(f"s_mov_b32 s{sJOB}, 1000")
    e(f"s_mov_b32 s{sUNIT}, s{sIDX}")
    e(f"s_cmp_lt_u32 s{sW}, 6")
    e("s_cbranch_scc1 K1_WKVSEG")
    e(f"s_mov_b32 s{sT0}, s{sIDX}")
    e(f"s_sub_u32 s{sT1}, s{sW}, 6")
    e(f"s_lshl_b32 s{sWM0}, s{sT1}, 11")
    e(f"s_add_u32 s{sWM0}, s{sWM0}, 12288")
    e(f"s_lshl_b32 s{sT1}, s{sT1}, 1")
    g.lab("K1_WPLAIN")
    e(f"s_cmp_lt_u32 s{sT0}, 10")
    e(f"s_cselect_b32 s{SRD_W}, s{P_WQKV}, s{P_W1}")
    e(f"s_cselect_b32 s{SRD_W+1}, s{P_WQKV+1}, s{P_W1+1}")
    e(f"s_mov_b32 s{SRD_W+2}, {D*1920*2}")
    e(f"s_cselect_b32 s{SRD_W+2}, s{SRD_W+2}, {D*FF*2}")
    e(f"s_mov_b32 s{SRD_W+3}, 0x20000")
    e(f"s_mov_b32 s{sT2}, 3840")
    e(f"s_cselect_b32 s{sT2}, s{sT2}, 3456")
    e(f"s_cselect_b32 s{sT3}, 0, 10")
    e(f"s_sub_u32 s{sT3}, s{sT0}, s{sT3}")
    e(f"s_lshl_b32 s{sT3}, s{sT3}, 7")
    e(f"s_lshl_b32 s{sWSTEP}, s{sT2}, 5")
    e(f"s_cmp_lt_u32 s{sT0}, 37")
    e(f"s_cselect_b32 s{sT3}, s{sT3}, {OOB}")
    for ee in range(2):
        e(f"v_xor_b32 v7, {ee}, v6")
        e(f"v_lshl_add_u32 v7, v4, 2, v7")
        e(f"s_add_u32 s{sT0}, s{sT1}, {ee}")
        e(f"s_lshl_b32 s{sT0}, s{sT0}, 3")
        e(f"v_add_u32 v8, s{sT0}, v5")
        e(f"v_mul_lo_u32 v8, v8, s{sT2}")
        e(f"v_lshl_add_u32 v8, v7, 4, v8")
        e(f"v_add_u32 v{DW[ee]}, s{sT3}, v8")
    e("s_branch K1_WDONE")
    g.lab("K1_WKVSEG")
    e(f"s_mov_b32 s{SRD_W}, s{P_WQKV}")
    e(f"s_mov_b32 s{SRD_W+1}, s{P_WQKV+1}")
    e(f"s_mov_b32 s{SRD_W+2}, {D*1920*2}")
    e(f"s_mov_b32 s{SRD_W+3}, 0x20000")
    e(f"s_mov_b32 s{sWSTEP}, {3840*32}")
    e(f"s_cmp_lt_u32 s{sW}, 3")
    e(f"s_cselect_b32 s{sT0}, 0, 3")
    e(f"s_mov_b32 s{sT2}, 1280")
    e(f"s_cselect_b32 s{sT2}, s{sT2}, 2560")
    e(f"s_cselect_b32 s{sWM0}, 0, 6144")
    e(f"s_sub_u32 s{sT0}, s{sW}, s{sT0}")
    e(f"s_lshl_b32 s{sT1}, s{sT0}, 11")
    e(f"s_add_u32 s{sWM0}, s{sWM0}, s{sT1}")
    e(f"s_mul_i32 s{sT3}, s{sIDX}, 160")
    e(f"s_add_u32 s{sT2}, s{sT2}, s{sT3}")
    e(f"s_lshl_b32 s{sT0}, s{sT0}, 7")
    for ee in range(2):
        e(f"v_add_u32 v7, s{sT0}, v{vLANE}")
        if ee: e("v_add_u32 v7, 64, v7")
        vdiv(g, 8, 7, 88, 383)
        e("v_mul_u32_u24 v9, 88, v8")
        e("v_sub_u32 v9, v7, v9")
        vdiv(g, 27, 9, 10, 87)
        e("v_mul_u32_u24 v28, 10, v27")
        e("v_sub_u32 v28, v9, v28")
        e("v_lshl_add_u32 v27, v8, 3, v27")
        e("v_mul_u32_u24 v27, 3840, v27")
        e("v_lshl_add_u32 v27, v28, 4, v27")
        e(f"v_add_u32 v27, s{sT2}, v27")
        e("v_cmp_gt_u32 vcc, 80, v9")
        e(f"v_mov_b32 v28, {OOB}")
        e("v_cndmask_b32 v27, v28, v27, vcc")
        e("v_cmp_gt_u32 vcc, 352, v7")
        e("s_nop 1")
        e(f"v_cndmask_b32 v{DW[ee]}, v28, v27, vcc")
    g.lab("K1_WDONE")
    e(f"s_add_u32 s{sWM0}, s{sWM0}, {WRING}")
    e(f"s_mov_b32 s{sWSO}, 0")
    e(f"s_mov_b32 s{sWSL}, 0")
    dma_w(g); dma_w(g)
    dma_x(g, 0); dma_x(g, 1)
    dma_w(g); dma_w(g)
    dma_x(g, 0)
    dma_w(g); dma_w(g)
    e(f"s_cmp_lt_u32 s{sJOB}, {NK2}")
    e("s_cbranch_scc0 K1_NOJOB")
    e(f"s_cmp_lt_u32 s{sJOB}, {NKF}")
    e(f"s_cselect_b32 s{SRD_J}, s{P_W2}, s{P_WO}")
    e(f"s_cselect_b32 s{SRD_J+1}, s{P_W2+1}, s{P_WO+1}")
    e(f"s_mov_b32 s{SRD_J+2}, {FF*D*2}")
    e(f"s_cselect_b32 s{SRD_J+2}, s{SRD_J+2}, {D*D*2}")
    e(f"s_mov_b32 s{SRD_J+3}, 0x20000")
    e(f"s_cselect_b32 s{sT3}, 1, 0")
    e(f"s_mul_i32 s{sT0}, s{sW}, 320")
    for i in range(5):
        e(f"v_add_u32 v7, s{sT0}, v{vLANE}")
        if i: e(f"v_add_u32 v7, {64*i}, v7")
        vdiv(g, 8, 7, 80, 2559)
        e("v_mul_u32_u24 v9, 80, v8")
        e("v_sub_u32 v9, v7, v9")
        e("v_and_b32 v4, 7, v8")
        e("v_xor_b32 v9, v9, v4")
        e(f"s_lshl_b32 s{sT1}, s{sJOB}, 5")
        e(f"v_add_u32 v5, s{sT1}, v8")
        e(f"s_sub_u32 s{sT1}, s{sJOB}, {NKF}")
        e(f"s_lshl_b32 s{sT1}, s{sT1}, 2")
        e(f"s_and_b32 s{sT1}, s{sT1}, 127")
        e("v_lshrrev_b32 v6, 3, v8")
        e(f"v_add_u32 v6, s{sT1}, v6")
        vdiv(g, 184, 6, 3, 160)
        e("v_mul_u32_u24 v185, 3, v184")
        e("v_sub_u32 v185, v6, v185")
        e("v_lshl_add_u32 v185, v185, 3, v4")
        e("v_mul_u32_u24 v184, 20, v184")
        e("v_add_u32 v184, v184, v185")
        e("v_mul_u32_u24 v184, 1280, v184")
        e(f"v_mov_b32 v186, {OOB}")
        e("v_cmp_gt_u32 vcc, 20, v185")
        e("s_nop 1")
        e("v_cndmask_b32 v184, v186, v184, vcc")
        e("v_mul_u32_u24 v5, 1280, v5")
        e(f"s_cmp_eq_u32 s{sT3}, 1")
        e("s_cselect_b64 vcc, -1, 0")
        e("s_nop 1")
        e("v_cndmask_b32 v5, v184, v5, vcc")
        e(f"v_lshl_add_u32 v{27+i}, v9, 4, v5")
    g.lab("K1_NOJOB")
    e(f"v_mov_b32 v4, 0\nv_mov_b32 v5, 0\nv_mov_b32 v6, 0\nv_mov_b32 v7, 0")
    e(f"v_lshlrev_b32 v8, 4, v{vLANE}")
    e(f"v_add_u32 v8, {ZERO}, v8")
    e("ds_write_b128 v8, v[4:7]")
    e(f"v_lshrrev_b32 v4, 2, v{vS}")
    e("v_sub_u32 v4, 4, v4")
    e("v_and_b32 v4, 3, v4")
    e(f"v_xor_b32 v4, v{vG}, v4")
    e("v_lshlrev_b32 v4, 4, v4")
    e(f"v_lshrrev_b32 v5, 3, v{vS}")
    e("v_lshl_add_u32 v4, v5, 10, v4")
    e(f"v_and_b32 v5, 7, v{vS}")
    e("v_lshl_add_u32 v4, v5, 6, v4")
    e(f"s_lshl_b32 s{sT0}, s{sRH}, 13")
    e(f"s_add_u32 s{sT0}, s{sT0}, {XRING}")
    for i in range(4):
        e(f"s_add_u32 s{sT1}, s{sC}, {i}")
        e(f"s_and_b32 s{sT1}, s{sT1}, 3")
        e(f"s_lshl_b32 s{sT1}, s{sT1}, 11")
        e(f"s_add_u32 s{sT1}, s{sT1}, s{sT0}")
        e(f"v_add_u32 v{AX[i]}, s{sT1}, v4")
    e(f"v_bfe_u32 v4, v{vLANE}, 2, 2")
    e(f"v_and_b32 v5, 3, v{vLANE}")
    e(f"s_cmp_eq_u32 s{sTYPE}, 1")
    e("s_cbranch_scc1 K1_AWP")
    e(f"s_cmp_lt_u32 s{sC}, 2")
    e("s_cbranch_scc0 K1_AWP2")
    e(f"v_mul_u32_u24 v6, 1408, v{vG}")
    e("v_mul_u32_u24 v7, 160, v4")
    e("v_add_u32 v6, v6, v7")
    e("v_mul_u32_u24 v7, 40, v5")
    e("v_add_u32 v6, v6, v7")
    e(f"s_mul_i32 s{sT0}, s{sC}, 6144")
    e(f"v_add_u32 v{AWA}, s{sT0}, v6")
    e(f"v_mov_b32 v{AWB}, v{AWA}")
    e("s_branch K1_AWDONE")
    g.lab("K1_AWP2")
    e(f"s_sub_u32 s{sT0}, s{sC}, 2")
    e(f"s_lshl_b32 s{sT0}, s{sT0}, 9")
    e(f"s_add_u32 s{sT0}, s{sT0}, 12288")
    e("s_branch K1_AWP_C")
    g.lab("K1_AWP")
    e(f"s_lshl_b32 s{sT0}, s{sC}, 12")
    g.lab("K1_AWP_C")
    e(f"v_and_b32 v6, 1, v{vG}")
    e("v_xor_b32 v6, v5, v6")
    e("v_lshlrev_b32 v6, 4, v6")
    e(f"v_lshl_add_u32 v6, v{vG}, 10, v6")
    e("v_lshl_add_u32 v6, v4, 6, v6")
    e(f"v_add_u32 v6, s{sT0}, v6")
    e("v_and_b32 v7, 1, v5")
    e(f"v_lshl_add_u32 v{AWA}, v7, 3, v6")
    e(f"v_xor_b32 v{AWB}, 8, v{AWA}")
    g.lab("K1_AWDONE")
    for r in range(ACC, ACC + 80): e(f"v_mov_b32 v{r}, 0")
    e(f"v_mov_b32 v{SX}, 0\nv_mov_b32 v{SXX}, 0")
    for r in CS: e(f"v_mov_b32 v{r}, 0")
    e(f"s_mov_b32 s{sT}, 0\ns_mov_b32 s{sWRS}, 0\ns_mov_b32 s{sXRS}, 0")
    e("s_waitcnt vmcnt(13) lgkmcnt(0)")
    e("s_barrier")
    e(f"s_cmp_eq_u32 s{sTYPE}, 1")
    e("s_cbranch_scc1 K1_P4")
    e(f"s_cmp_lt_u32 s{sC}, 2")
    e("s_cbranch_scc0 K1_P2")
    for x in xreads(0, 0) + wreads('K5', 0): e(x)
    e(f"s_cmp_eq_u32 s{sRH}, 0")
    e("s_cbranch_scc0 K1_K5_B")
    loop_body(g, 'K5', 0, "K1_K5_LA")
    e("s_branch K1_K5_EPI")
    g.lab("K1_K5_B")
    loop_body(g, 'K5', 1, "K1_K5_LB")
    g.lab("K1_K5_EPI")
    stats_cs_exchange(g, 5)
    t = TMP + 40
    e(f"s_mul_i32 s{sT0}, s{sC}, {VST-KST}")
    e(f"s_mul_i32 s{sT1}, s{sRH}, {64*208}")
    e(f"s_add_u32 s{sT0}, s{sT0}, s{sT1}")
    e(f"v_mul_u32_u24 v{t+20}, 208, v{vS}")
    e(f"v_mul_u32_u24 v{t+21}, 48, v{vG}")
    e(f"v_add_u32 v{t+20}, v{t+20}, v{t+21}")
    e(f"v_add_u32 v{t+20}, s{sT0}, v{t+20}")
    e(f"s_mul_i32 s{sT2}, s{sC}, 0x3f80")
    for i in range(4):
        p = t + 4
        for j in range(5):
            normalize(g, j, i, t)
            a = acc(j, i)
            e(f"v_cvt_pk_bf16_f32 v{p+2*j}, v{a}, v{a+1}")
            e(f"v_cvt_pk_bf16_f32 v{p+2*j+1}, v{a+2}, v{a+3}")
        e(f"v_mov_b32 v{p+10}, s{sT2}")
        e(f"v_mov_b32 v{p+11}, 0")
        e(f"s_add_u32 s{sT1}, s{sC}, {i}")
        e(f"s_and_b32 s{sT1}, s{sT1}, 3")
        e(f"s_mul_i32 s{sT1}, s{sT1}, {16*208}")
        e(f"v_add_u32 v{t+22}, s{sT1}, v{t+20}")
        for q in range(3):
            e(f"ds_write_b128 v{t+22}, v[{p+4*q}:{p+4*q+3}] offset:{16*q}")
    e("s_branch K1_KV_E2")
    g.lab("K1_P2")
    for x in xreads(0, 0) + wreads('P2', 0): e(x)
    e(f"s_cmp_eq_u32 s{sRH}, 0")
    e("s_cbranch_scc0 K1_P2_B")
    loop_body(g, 'P2', 0, "K1_P2_LA")
    e("s_branch K1_P2_EPI")
    g.lab("K1_P2_B")
    loop_body(g, 'P2', 1, "K1_P2_LB")
    g.lab("K1_P2_EPI")
    stats_cs_exchange(g, 2)
    e(f"s_sub_u32 s{sT3}, s{sC}, 2")
    e(f"s_lshl_b32 s{sT3}, s{sT3}, 5")
    q_store(g, [(0, 0, 0), (1, 0, 1)], sT3)
    g.lab("K1_KV_E2")
    e("s_waitcnt lgkmcnt(0)")
    e("s_barrier")
    B = 32
    A = 44
    L = 104
    e(f"s_mul_i32 s{sT0}, s{sW}, {16*208}")
    e(f"v_mul_u32_u24 v4, 208, v{vS}")
    e(f"v_mul_u32_u24 v5, 48, v{vG}")
    e("v_add_u32 v4, v4, v5")
    e(f"v_add_u32 v4, s{sT0}, v4")
    for q in range(3):
        e(f"ds_read_b128 v[{B+4*q}:{B+4*q+3}], v4 offset:{KST+16*q}")
    e(f"v_bfe_u32 v5, v{vLANE}, 2, 2")
    e(f"v_and_b32 v6, 3, v{vLANE}")
    e(f"v_mul_u32_u24 v7, 800, v{vG}")
    e("v_mul_u32_u24 v5, 40, v5")
    e("v_add_u32 v7, v7, v5")
    e(f"v_add_u32 v7, {WPHI}, v7")
    e(f"v_mov_b32 v8, {ZERO}")
    e(f"v_cmp_eq_u32 vcc, v6, v{vG}")
    e("s_nop 1")
    e("v_cndmask_b32 v7, v8, v7, vcc")
    for to in range(5):
        for wd in range(3):
            r = A + (to * 3 + wd) * 4
            e(f"ds_read_b64_tr_b16 v[{r}:{r+1}], v7 offset:{(8*wd)*40 + 8*to}")
            if wd < 2:
                e(f"ds_read_b64_tr_b16 v[{r+2}:{r+3}], v7 offset:{(8*wd+4)*40 + 8*to}")
            else:
                e(f"v_mov_b32 v{r+2}, 0\nv_mov_b32 v{r+3}, 0")
    e("s_waitcnt lgkmcnt(0)")
    for wd in range(3):
        for to in range(5):
            r = A + (to * 3 + wd) * 4
            c = f"v[{L+4*to}:{L+4*to+3}]" if wd else "0"
            e(f"v_mfma_f32_16x16x32_bf16 v[{L+4*to}:{L+4*to+3}], v[{r}:{r+3}], v[{B+4*wd}:{B+4*wd+3}], {c}")
    e("s_nop 7")
    softmax_pm(g, L, 128, 168, 4)
    e(f"s_mul_i32 s{sT0}, s{sW}, {16*336}")
    e(f"v_mul_u32_u24 v4, 336, v{vS}")
    e(f"v_mul_u32_u24 v5, 80, v{vG}")
    e("v_add_u32 v4, v4, v5")
    e(f"v_add_u32 v4, s{sT0}, v4")
    for q in range(5):
        e(f"ds_write_b128 v4, v[{168+4*q}:{168+4*q+3}] offset:{PHIS+16*q}")
    e("s_waitcnt lgkmcnt(0)")
    e("s_barrier")
    e(f"s_lshr_b32 s{sT0}, s{sW}, 1")
    e(f"s_and_b32 s{sT1}, s{sW}, 1")
    e(f"v_bfe_u32 v5, v{vLANE}, 2, 2")
    e(f"v_and_b32 v6, 3, v{vLANE}")
    e(f"v_lshl_add_u32 v5, v{vG}, 3, v5")
    e("v_mul_u32_u24 v7, 336, v5")
    e("v_lshl_add_u32 v7, v6, 3, v7")
    e(f"s_mul_i32 s{sT2}, s{sT0}, 80")
    e(f"s_add_u32 s{sT2}, s{sT2}, {PHIS}")
    e(f"v_add_u32 v7, s{sT2}, v7")
    e("v_mul_u32_u24 v8, 208, v5")
    e("v_lshl_add_u32 v8, v6, 3, v8")
    e(f"s_mul_i32 s{sT2}, s{sT0}, 48")
    e(f"s_lshl_b32 s{sT3}, s{sT1}, 5")
    e(f"s_add_u32 s{sT2}, s{sT2}, s{sT3}")
    e(f"v_add_u32 v8, s{sT2}, v8")
    A3, B3, D3 = 32, 80, 104
    for kk in range(4):
        for hh in range(2):
            r = B3 + 4 * kk + 2 * hh
            e(f"ds_read_b64_tr_b16 v[{r}:{r+1}], v8 offset:{VST + (32*kk+4*hh)*208}")
        for mt in range(3):
            for hh in range(2):
                r = A3 + (kk * 3 + mt) * 4 + 2 * hh
                e(f"ds_read_b64_tr_b16 v[{r}:{r+1}], v7 offset:{(32*kk+4*hh)*336 + 32*mt}")
    e("s_waitcnt lgkmcnt(0)")
    for kk in range(4):
        for mt in range(3):
            r = A3 + (kk * 3 + mt) * 4
            c = f"v[{D3+4*mt}:{D3+4*mt+3}]" if kk else "0"
            e(f"v_mfma_f32_16x16x32_bf16 v[{D3+4*mt}:{D3+4*mt+3}], v[{r}:{r+3}], v[{B3+4*kk}:{B3+4*kk+3}], {c}")
    e(f"s_lshl_b32 s{sT2}, s{sT1}, 4")
    e(f"v_add_u32 v5, s{sT2}, v{vS}")
    e("v_mul_u32_u24 v6, 160, v5")
    e(f"v_lshl_add_u32 v6, v{vG}, 4, v6")
    e(f"v_mov_b32 v9, {OOB}")
    e("v_cmp_ge_u32 vcc, 20, v5")
    e("s_nop 1")
    e("v_cndmask_b32 v6, v9, v6, vcc")
    e(f"v_cmp_gt_u32 vcc, 2, v{vG}")
    e("s_nop 1")
    e("v_cndmask_b32 v9, v9, v6, vcc")
    e(f"s_lshl_b32 s{sT2}, s{sRB}, 5")
    e(f"s_lshl_b32 s{sT3}, s{sIDX}, 2")
    e(f"s_add_u32 s{sT2}, s{sT2}, s{sT3}")
    e(f"s_add_u32 s{sT2}, s{sT2}, s{sT0}")
    e(f"s_mul_i32 s{sT2}, s{sT2}, {KVP_STRIDE}")
    e(f"s_add_u32 s{sT2}, s{sT2}, {WS_KVP}")
    e("s_nop 7")
    e(f"buffer_store_dwordx4 v[{D3}:{D3+3}], v6, s[{SRD_WS}:{SRD_WS+3}], s{sT2} offen")
    e(f"buffer_store_dwordx4 v[{D3+4}:{D3+7}], v6, s[{SRD_WS}:{SRD_WS+3}], s{sT2} offen offset:64")
    e(f"buffer_store_dwordx4 v[{D3+8}:{D3+11}], v9, s[{SRD_WS}:{SRD_WS+3}], s{sT2} offen offset:128")
    e("s_branch K1_END")
    g.lab("K1_P4")
    for x in xreads(0, 0) + wreads('P4', 0): e(x)
    e(f"s_cmp_eq_u32 s{sRH}, 0")
    e("s_cbranch_scc0 K1_P4_B")
    loop_body(g, 'P4', 0, "K1_P4_LA")
    e("s_branch K1_P4_EPI")
    g.lab("K1_P4_B")
    loop_body(g, 'P4', 1, "K1_P4_LB")
    g.lab("K1_P4_EPI")
    stats_cs_exchange(g, 4)
    e(f"s_cmp_lt_u32 s{sUNIT}, 10")
    e("s_cbranch_scc1 K1_P4_Q")
    e(f"s_cmp_lt_u32 s{sUNIT}, 37")
    e("s_cbranch_scc0 K1_P4_JOB")
    t = TMP + 40
    e(f"v_lshlrev_b32 v{t+10}, 4, v{vLANE}")
    for kp in range(2):
        for i in range(4):
            p = t + 4
            for var in range(2):
                j = 2 * kp + var
                normalize(g, j, i, t)
                a = acc(j, i)
                e(f"v_cvt_pk_bf16_f32 v{p+2*var}, v{a}, v{a+1}")
                e(f"v_cvt_pk_bf16_f32 v{p+2*var+1}, v{a+2}, v{a+3}")
            for k in range(4):
                e(f"v_pk_max_i16 v{p+k}, v{p+k}, 0")
            e(f"s_lshl_b32 s{sT0}, s{sRB}, 1")
            e(f"s_add_u32 s{sT0}, s{sT0}, s{sRH}")
            e(f"s_mul_i32 s{sT0}, s{sT0}, {NKF}")
            e(f"s_lshl_b32 s{sT1}, s{sUNIT}, 1")
            e(f"s_add_u32 s{sT0}, s{sT0}, s{sT1}")
            e(f"s_add_u32 s{sT0}, s{sT0}, {kp-20 & 0xffffffff}")
            e(f"s_lshl_b32 s{sT0}, s{sT0}, 2")
            e(f"s_add_u32 s{sT1}, s{sC}, {i}")
            e(f"s_and_b32 s{sT1}, s{sT1}, 3")
            e(f"s_add_u32 s{sT0}, s{sT0}, s{sT1}")
            e(f"s_lshl_b32 s{sT0}, s{sT0}, 10")
            if WS_HF: e(f"s_add_u32 s{sT0}, s{sT0}, {WS_HF}")
            e(f"buffer_store_dwordx4 v[{p}:{p+3}], v{t+10}, s[{SRD_WS}:{SRD_WS+3}], s{sT0} offen")
            e("s_nop 1")
    e("s_branch K1_P4_JOB")
    g.lab("K1_P4_Q")
    q_store(g, [(0, 0, 0), (1, 0, 1), (2, 1, 0), (3, 1, 1)], None)
    g.lab("K1_P4_JOB")
    e(f"s_cmp_lt_u32 s{sJOB}, {NK2}")
    e("s_cbranch_scc0 K1_END")
    e(f"v_bfe_u32 v4, v{vLANE}, 2, 2")
    e(f"v_and_b32 v5, 3, v{vLANE}")
    e(f"v_and_b32 v6, 1, v{vG}")
    e(f"s_cmp_lt_u32 s{sJOB}, {NKF}")
    e(f"s_cselect_b32 s{sT0}, 1, 0")
    e(f"v_and_b32 v6, s{sT0}, v6")
    for hh in range(2):
        e(f"v_xor_b32 v7, {hh}, v6")
        e("v_lshl_add_u32 v7, v7, 2, v4")
        e(f"v_lshl_add_u32 v8, v{vG}, 3, v7")
        e("v_mul_u32_u24 v8, 1280, v8")
        for tt in range(5):
            e(f"s_mul_i32 s{sT1}, s{sW}, 10")
            if tt < 4:
                e(f"s_add_u32 s{sT1}, s{sT1}, {4*(tt>>1)}")
                e(f"v_add_u32 v9, s{sT1}, v5")
                e("v_xor_b32 v9, v9, v7")
                e("v_lshl_add_u32 v9, v9, 4, v8")
                off = JOBL + 8 * (tt & 1)
            else:
                e(f"s_add_u32 s{sT1}, s{sT1}, 8")
                e("v_lshrrev_b32 v9, 1, v5")
                e(f"v_add_u32 v9, s{sT1}, v9")
                e("v_xor_b32 v9, v9, v7")
                e("v_lshl_add_u32 v9, v9, 4, v8")
                e("v_and_b32 v10, 1, v5")
                e("v_lshl_add_u32 v9, v10, 3, v9")
                off = JOBL
            r = 32 + 4 * tt + 2 * hh
            e(f"ds_read_b64_tr_b16 v[{r}:{r+1}], v9 offset:{off}")
    e(f"v_lshlrev_b32 v4, 4, v{vLANE}")
    e(f"s_mul_i32 s{sT0}, s{sW}, {NK2}")
    e(f"s_add_u32 s{sT0}, s{sT0}, s{sJOB}")
    e(f"s_mul_i32 s{sT0}, s{sT0}, 5120")
    e(f"s_add_u32 s{sT0}, s{sT0}, {WS_WT}")
    e("s_waitcnt lgkmcnt(0)")
    for tt in range(5):
        e(f"buffer_store_dwordx4 v[{32+4*tt}:{35+4*tt}], v4, s[{SRD_WS}:{SRD_WS+3}], s{sT0} offen offset:{0}" if tt == 0 else
          f"s_add_u32 s{sT0}, s{sT0}, 1024\nbuffer_store_dwordx4 v[{32+4*tt}:{35+4*tt}], v4, s[{SRD_WS}:{SRD_WS+3}], s{sT0} offen")
    g.lab("K1_END")
    e("s_endpgm")
    return g.text()

def softmax_pm(g, L, E, P, T):
    e = g.e
    mx, mn, c = T, T + 1, T + 2
    e(f"v_max3_f32 v{mx}, v{L}, v{L+1}, v{L+2}")
    e(f"v_min3_f32 v{mn}, v{L}, v{L+1}, v{L+2}")
    for k in range(3, 19, 2):
        e(f"v_max3_f32 v{mx}, v{mx}, v{L+k}, v{L+k+1}")
        e(f"v_min3_f32 v{mn}, v{mn}, v{L+k}, v{L+k+1}")
    e(f"v_max_f32 v{mx}, v{mx}, v{L+19}")
    e(f"v_min_f32 v{mn}, v{mn}, v{L+19}")
    e(f"v_mov_b32 v{T+2}, 0x3fb8aa3b")
    e(f"v_mov_b32 v{T+4}, 0xbfb8aa3b")
    e(f"v_mul_f32 v{T+3}, v{T+4}, v{mx}")
    e(f"v_mul_f32 v{T+5}, v{T+2}, v{mn}")
    for k in range(0, 20, 2):
        e(f"v_pk_fma_f32 v[{E+k}:{E+k+1}], v[{L+k}:{L+k+1}], v[{T+2}:{T+3}], v[{T+2}:{T+3}] op_sel:[0,0,1] op_sel_hi:[1,0,1]")
        e(f"v_pk_fma_f32 v[{E+20+k}:{E+21+k}], v[{L+k}:{L+k+1}], v[{T+4}:{T+5}], v[{T+4}:{T+5}] op_sel:[0,0,1] op_sel_hi:[1,0,1]")
    for k in range(40):
        e(f"v_exp_f32 v{E+k}, v{E+k}")
    e("s_nop 0")
    for base, acc_ in ((E, T), (E + 20, T + 6)):
        e(f"v_pk_add_f32 v[{acc_}:{acc_+1}], v[{base}:{base+1}], v[{base+2}:{base+3}]")
        for k in range(4, 20, 2):
            e(f"v_pk_add_f32 v[{acc_}:{acc_+1}], v[{acc_}:{acc_+1}], v[{base+k}:{base+k+1}]")
        e(f"v_add_f32 v{acc_}, v{acc_}, v{acc_+1}")
    e(f"v_rcp_f32 v{T}, v{T}")
    e(f"v_rcp_f32 v{T+6}, v{T+6}")
    e("s_nop 0")
    for base, acc_, po in ((E, T, P), (E + 20, T + 6, P + 10)):
        for k in range(0, 20, 2):
            e(f"v_pk_mul_f32 v[{base+k}:{base+k+1}], v[{base+k}:{base+k+1}], v[{acc_}:{acc_+1}] op_sel_hi:[1,0]")
            e(f"v_cvt_pk_bf16_f32 v{po+k//2}, v{base+k}, v{base+k+1}")

if __name__ == "__main__":
    print(gen_k1())
```

```python
from gen_common import *
from gen_k1 import softmax_pm, OOB

RED = 0
KVT = 81920
WPH = KVT + 2048
ZER = WPH + 1024
LDS2 = ZER + 2048

P_X, P_WPHI, P_OUT, P_DBG, P_WS = 8, 12, 16, 18, 20
SRD_WS, SRD_X, SRD_OUT, SRD_PHI = 24, 28, 32, 36
sW, sRBK, sNB, sHH, sSG = 44, 45, 46, 47, 48
sT0, sT1, sT2, sT3 = 50, 51, 52, 53
sAF, sWF, sAO, sWO, sAD = 54, 55, 56, 57, 58
sA, sB = 59, 60
vLANE, vG, vS, vL16, vL16B = 1, 2, 3, 4, 5
NSET = 4
def aacc(nt, st): return (nt * 4 + st) * 4
def aset(k): return 80 + 36 * k

class VM:
    def __init__(self, g): self.g = g; self.q = []
    def issue(self, tag, txt): self.g.e(txt); self.q.append(tag)
    def wait(self, tags, extra=""):
        idx = max([i for i, t in enumerate(self.q) if t in tags], default=-1)
        if idx < 0:
            if extra: self.g.e(f"s_waitcnt {extra}")
            return
        n = len(self.q) - 1 - idx
        assert n <= 63
        self.g.e(f"s_waitcnt vmcnt({n}) {extra}".strip())
        self.q = self.q[idx + 1:]
    def waitall(self, extra=""):
        self.g.e(f"s_waitcnt vmcnt(0) {extra}".strip()); self.q = []

def gen_k2(name="hh2_kernel"):
    g = G(); e = g.e
    vm = VM(g)
    g.L.append(f".globl {name}\n.p2align 8\n.type {name},@function\n{name}:")
    e("s_cmp_ge_u32 s2, 256")
    e("s_cbranch_scc1 K2_END")
    e("s_load_dwordx2 s[8:9], s[0:1], 0")
    e("s_load_dwordx2 s[12:13], s[0:1], 16")
    e("s_load_dwordx4 s[16:19], s[0:1], 56")
    e("s_load_dwordx2 s[20:21], s[0:1], 72")
    e(f"v_and_b32 v{vLANE}, 63, v0")
    e("v_lshrrev_b32 v6, 6, v0")
    e(f"v_lshrrev_b32 v{vG}, 4, v{vLANE}")
    e(f"v_readfirstlane_b32 s{sW}, v6")
    e(f"v_and_b32 v{vS}, 15, v{vLANE}")
    e(f"v_lshlrev_b32 v{vL16}, 4, v{vLANE}")
    e(f"v_add_u32 v{vL16B}, 4096, v{vL16}")
    e(f"s_and_b32 s{sT0}, s2, 7")
    e(f"s_lshr_b32 s{sT1}, s2, 3")
    e(f"s_lshr_b32 s{sT2}, s{sT0}, 1")
    e(f"s_lshl_b32 s{sRBK}, s{sT2}, 3")
    e(f"s_and_b32 s{sT2}, s{sT1}, 7")
    e(f"s_add_u32 s{sRBK}, s{sRBK}, s{sT2}")
    e(f"s_and_b32 s{sT2}, s{sT0}, 1")
    e(f"s_lshl_b32 s{sNB}, s{sT2}, 2")
    e(f"s_lshr_b32 s{sT2}, s{sT1}, 3")
    e(f"s_add_u32 s{sNB}, s{sNB}, s{sT2}")
    e(f"s_lshl_b32 s{sHH}, s{sT0}, 2")
    e(f"s_and_b32 s{sT2}, s{sT1}, 3")
    e(f"s_add_u32 s{sHH}, s{sHH}, s{sT2}")
    e(f"s_lshr_b32 s{sSG}, s{sT1}, 2")
    e("s_waitcnt lgkmcnt(0)")
    srd(g, SRD_WS, P_WS, P_WS + 1, WS_END)
    srd(g, SRD_X, P_X, P_X + 1, S * D * 2)
    srd(g, SRD_OUT, P_OUT, P_OUT + 1, S * D * 2)
    e(f"s_mul_i32 s{sT0}, s{sHH}, 800")
    e(f"s_add_u32 s{SRD_PHI}, s{P_WPHI}, s{sT0}")
    e(f"s_addc_u32 s{SRD_PHI+1}, s{P_WPHI+1}, 0")
    e(f"s_mov_b32 s{SRD_PHI+2}, 800")
    e(f"s_mov_b32 s{SRD_PHI+3}, 0x20000")
    e(f"s_mov_b32 m0, {WPH}")
    e("s_nop 0")
    vm.issue("phi", f"buffer_load_dwordx4 v{vL16}, s[{SRD_PHI}:{SRD_PHI+3}], 0 offen lds")
    PB = 64
    e("v_lshlrev_b32 v6, 4, v0")
    e(f"v_mov_b32 v7, {OOB}")
    e("v_cmp_gt_u32 vcc, 210, v0")
    e("s_nop 1")
    e("v_cndmask_b32 v6, v7, v6, vcc")
    e(f"s_mul_i32 s{sT0}, s{sHH}, {KVP_STRIDE}")
    e(f"s_add_u32 s{sT0}, s{sT0}, {WS_KVP}")
    for rb in range(16):
        vm.issue("kvp", f"buffer_load_dwordx4 v[{PB+4*rb}:{PB+4*rb+3}], v6, s[{SRD_WS}:{SRD_WS+3}], s{sT0} offen")
        if rb < 15: e(f"s_add_u32 s{sT0}, s{sT0}, {32*KVP_STRIDE}")
    Q = 32
    e(f"s_lshl_b32 s{sT0}, s{sHH}, 11")
    e(f"s_lshl_b32 s{sT1}, s{sSG}, 8")
    e(f"s_add_u32 s{sT0}, s{sT0}, s{sT1}")
    e(f"s_lshl_b32 s{sT1}, s{sW}, 6")
    e(f"s_add_u32 s{sT0}, s{sT0}, s{sT1}")
    e(f"s_mul_i32 s{sT0}, s{sT0}, 40")
    e(f"s_add_u32 s{sT0}, s{sT0}, {WS_QB}")
    e(f"v_mul_u32_u24 v7, 40, v{vLANE}")
    vm.issue("q", f"buffer_load_dwordx4 v[{Q}:{Q+3}], v7, s[{SRD_WS}:{SRD_WS+3}], s{sT0} offen")
    vm.issue("q", f"buffer_load_dwordx4 v[{Q+4}:{Q+7}], v7, s[{SRD_WS}:{SRD_WS+3}], s{sT0} offen offset:16")
    vm.issue("q", f"buffer_load_dwordx2 v[{Q+8}:{Q+9}], v7, s[{SRD_WS}:{SRD_WS+3}], s{sT0} offen offset:32")
    e(f"v_mov_b32 v{Q+10}, 0\nv_mov_b32 v{Q+11}, 0")
    e(f"s_mul_i32 s{sT0}, s{sW}, 14")
    e(f"s_cmp_eq_u32 s{sW}, 3")
    e(f"s_cselect_b32 s{sT0}, 41, s{sT0}")
    e(f"s_mul_i32 s{sT1}, s{sRBK}, {NKF}")
    e(f"s_add_u32 s{sT1}, s{sT1}, s{sT0}")
    e(f"s_lshl_b32 s{sAF}, s{sT1}, 12")
    if WS_HF: e(f"s_add_u32 s{sAF}, s{sAF}, {WS_HF}")
    e(f"s_mul_i32 s{sT1}, s{sNB}, {NK2}")
    e(f"s_add_u32 s{sT2}, s{sT1}, s{sT0}")
    e(f"s_mul_i32 s{sWF}, s{sT2}, 5120")
    e(f"s_add_u32 s{sWF}, s{sWF}, {WS_WT}")
    e(f"s_mul_i32 s{sT0}, s{sW}, 6")
    e(f"s_add_u32 s{sT2}, s{sT1}, s{sT0}")
    e(f"s_add_u32 s{sT2}, s{sT2}, {NKF}")
    e(f"s_mul_i32 s{sWO}, s{sT2}, 5120")
    e(f"s_add_u32 s{sWO}, s{sWO}, {WS_WT}")
    e(f"s_mul_i32 s{sT1}, s{sRBK}, {NKO}")
    e(f"s_add_u32 s{sT1}, s{sT1}, s{sT0}")
    e(f"s_lshl_b32 s{sAO}, s{sT1}, 12")
    e(f"s_add_u32 s{sAO}, s{sAO}, {WS_OF}")
    e(f"s_add_u32 s{sAD}, s{sAF}, {13*4096}")
    e(f"s_cmp_ge_u32 s{sW}, 2")
    e(f"s_cselect_b32 s{sAD}, {OOB - 8192}, s{sAD}")

    def step_loads(p):
        k = p % NSET; base = aset(k)
        out = []
        if p < 14:
            if p == 13: pre_a = f"s_mov_b32 s{sA}, s{sAD}"
            else: pre_a = f"s_add_u32 s{sA}, s{sAF}, {p*4096}"
            pre_w = f"s_add_u32 s{sB}, s{sWF}, {p*5120}"
        else:
            pre_a = f"s_add_u32 s{sA}, s{sAO}, {(p-14)*4096}"
            pre_w = f"s_add_u32 s{sB}, s{sWO}, {(p-14)*5120}"
        W = []
        for nt in range(5):
            r = base + 4 * nt
            va, off = (vL16, nt * 1024) if nt < 4 else (vL16B, 0)
            W.append(f"buffer_load_dwordx4 a[{r}:{r+3}], v{va}, s[{SRD_WS}:{SRD_WS+3}], s{sB} offen offset:{off}")
        A = []
        for st in range(4):
            r = base + 20 + 4 * st
            A.append(f"buffer_load_dwordx4 a[{r}:{r+3}], v{vL16}, s[{SRD_WS}:{SRD_WS+3}], s{sA} offen offset:{st*1024} sc1")
        return pre_w, W, pre_a, A
    for p in range(NSET):
        pw, W, pa, A = step_loads(p)
        e(pw)
        for x in W: vm.issue(("s", p), x)
        e(pa)
        for x in A: vm.issue(("s", p), x)
    for r in range(80): e(f"v_accvgpr_write_b32 a{r}, 0")
    e("v_mov_b32 v8, 0\nv_mov_b32 v9, 0\nv_mov_b32 v10, 0\nv_mov_b32 v11, 0")
    e("v_lshlrev_b32 v6, 4, v0")
    e(f"v_add_u32 v6, {ZER}, v6")
    e("v_cmp_gt_u32 vcc, 128, v0")
    e(f"s_and_saveexec_b64 s[{sT2}:{sT3}], vcc")
    e("ds_write_b128 v6, v[8:11]")
    e(f"s_mov_b64 exec, s[{sT2}:{sT3}]")
    vm.wait(["kvp"])
    for k in (0, 2):
        for rb in range(1, 16):
            e(f"v_pk_add_f32 v[{PB+k}:{PB+k+1}], v[{PB+k}:{PB+k+1}], v[{PB+4*rb+k}:{PB+4*rb+k+1}]")
    e(f"v_cvt_pk_bf16_f32 v8, v{PB}, v{PB+1}")
    e(f"v_cvt_pk_bf16_f32 v9, v{PB+2}, v{PB+3}")
    e("v_lshlrev_b32 v6, 3, v0")
    e(f"v_add_u32 v6, {KVT}, v6")
    e(f"ds_write_b64 v6, v[8:9]")
    e("s_waitcnt lgkmcnt(0)")
    e("s_barrier")
    A = 64
    L = 124
    e(f"v_bfe_u32 v6, v{vLANE}, 2, 2")
    e(f"v_and_b32 v7, 3, v{vLANE}")
    e("v_mul_u32_u24 v8, 40, v6")
    e(f"v_add_u32 v8, {WPH}, v8")
    e(f"v_mov_b32 v9, {ZER}")
    e(f"v_cmp_eq_u32 vcc, v7, v{vG}")
    e("s_nop 1")
    e("v_cndmask_b32 v8, v9, v8, vcc")
    for to in range(5):
        for wd in range(3):
            r = A + (to * 3 + wd) * 4
            e(f"ds_read_b64_tr_b16 v[{r}:{r+1}], v8 offset:{(8*wd)*40 + 8*to}")
            if wd < 2:
                e(f"ds_read_b64_tr_b16 v[{r+2}:{r+3}], v8 offset:{(8*wd+4)*40 + 8*to}")
            else:
                e(f"v_mov_b32 v{r+2}, 0\nv_mov_b32 v{r+3}, 0")
    KA = 128 + 16
    KA = 136
    assert KA + 120 <= 256
    vm.wait(["q"], "lgkmcnt(0)")
    for wd in range(3):
        for to in range(5):
            r = A + (to * 3 + wd) * 4
            c = f"v[{L+4*to}:{L+4*to+3}]" if wd else "0"
            e(f"v_mfma_f32_16x16x32_bf16 v[{L+4*to}:{L+4*to+3}], v[{r}:{r+3}], v[{Q+4*wd}:{Q+4*wd+3}], {c}")
    e("v_mul_u32_u24 v8, 80, v7")
    e(f"v_add_u32 v8, {KVT}, v8")
    e(f"v_mov_b32 v9, {ZER}")
    e(f"v_cmp_eq_u32 vcc, v6, v{vG}")
    e("s_nop 1")
    e("v_cndmask_b32 v8, v9, v8, vcc")
    e("s_nop 4")
    def kar(to, wd):
        idx = to * 5 + wd
        return 144 + 4 * idx if idx < 28 else 24 + 4 * (idx - 28)
    for to in range(6):
        for wd in range(5):
            r = kar(to, wd)
            e(f"ds_read_b128 v[{r}:{r+3}], v8 offset:{4*to*80 + 16*wd}")
    E, P, T = 64, 104, 12
    softmax_pm(g, L, E, P, T)
    O = 64
    e("s_waitcnt lgkmcnt(0)")
    e("s_nop 1")
    for wd in range(5):
        for to in range(6):
            r = kar(to, wd)
            c = f"v[{O+4*to}:{O+4*to+3}]" if wd else "0"
            e(f"v_mfma_f32_16x16x32_bf16 v[{O+4*to}:{O+4*to+3}], v[{r}:{r+3}], v[{P+4*wd}:{P+4*wd+3}], {c}")
    e("s_nop 7")
    e("s_nop 1")
    e(f"v_add_f32 v12, 0x358637bd, v{O+20}")
    e("v_rcp_f32 v12, v12")
    e("s_nop 0")
    OP = 88
    for k in range(0, 20, 2):
        e(f"v_pk_mul_f32 v[{O+k}:{O+k+1}], v[{O+k}:{O+k+1}], v[12:13] op_sel_hi:[1,0]")
        e(f"v_cvt_pk_bf16_f32 v{OP+k//2}, v{O+k}, v{O+k+1}")
    e(f"v_mov_b32 v{OP+10}, 0\nv_mov_b32 v{OP+11}, 0")
    e(f"v_lshlrev_b32 v6, 10, v{vG}")
    e(f"v_lshl_add_u32 v6, v{vS}, 4, v6")
    e(f"s_lshl_b32 s{sT0}, s{sSG}, 2")
    e(f"s_add_u32 s{sT0}, s{sT0}, s{sW}")
    e(f"s_mul_i32 s{sT0}, s{sT0}, {NKO}")
    e(f"s_mul_i32 s{sT1}, s{sHH}, 3")
    for i3 in range(3):
        e(f"s_add_u32 s{sT2}, s{sT1}, {i3}")
        e(f"s_lshr_b32 s{sT3}, s{sT2}, 2")
        e(f"s_add_u32 s{sT3}, s{sT3}, s{sT0}")
        e(f"s_lshl_b32 s{sT3}, s{sT3}, 12")
        e(f"s_and_b32 s{sT2}, s{sT2}, 3")
        e(f"s_lshl_b32 s{sT2}, s{sT2}, 8")
        e(f"s_add_u32 s{sT3}, s{sT3}, s{sT2}")
        e(f"s_add_u32 s{sT3}, s{sT3}, {WS_OF}")
        vm.issue("ost", f"buffer_store_dwordx4 v[{OP+4*i3}:{OP+4*i3+3}], v6, s[{SRD_WS}:{SRD_WS+3}], s{sT3} offen sc0 sc1")
    vm.waitall()
    e("s_barrier")
    e(f"s_cmp_eq_u32 s{sW}, 0")
    e("s_cbranch_scc0 K2_NOSIG")
    e(f"s_lshl_b32 s{sT0}, s{sSG}, 2")
    e(f"v_mov_b32 v6, s{sT0}")
    e("v_mov_b32 v7, 1")
    e(f"v_cmp_eq_u32 vcc, 0, v{vLANE}")
    e(f"s_and_saveexec_b64 s[{sT2}:{sT3}], vcc")
    e(f"global_atomic_add v6, v7, s[{P_DBG}:{P_DBG+1}]")
    e(f"s_mov_b64 exec, s[{sT2}:{sT3}]")
    g.lab("K2_NOSIG")
    e(f"s_lshr_b32 s{sT0}, s{sRBK}, 2")
    e(f"s_lshl_b32 s{sT0}, s{sT0}, 2")
    e(f"v_mov_b32 v20, s{sT0}")
    XR = 32
    for s_ in range(20):
        k = s_ % NSET; base = aset(k)
        if s_ >= NSET:
            vm.wait([("s", s_)])
        p = s_ + NSET
        mf = []
        for nt in range(5):
            for st in range(4):
                a = base + 4 * nt; b = base + 20 + 4 * st; c = aacc(nt, st)
                mf.append(f"v_mfma_f32_16x16x32_bf16 a[{c}:{c+3}], a[{a}:{a+3}], a[{b}:{b+3}], a[{c}:{c+3}]")
        if s_ == 6:
            vm.issue("poll", f"global_load_dword v21, v20, s[{P_DBG}:{P_DBG+1}] sc1")
        if s_ == 10:
            vm.wait(["poll"])
            e("v_readfirstlane_b32 s61, v21")
            e("s_cmp_ge_u32 s61, 32")
            e("s_cbranch_scc1 K2_READY")
            g.lab("K2_SPIN")
            e("s_sleep 2")
            e(f"global_load_dword v21, v20, s[{P_DBG}:{P_DBG+1}] sc1")
            e("s_waitcnt vmcnt(0)")
            e("v_readfirstlane_b32 s61, v21")
            e("s_cmp_ge_u32 s61, 32")
            e("s_cbranch_scc0 K2_SPIN")
            g.lab("K2_READY")
        if s_ == 15:
            e(f"s_lshl_b32 s{sT0}, s{sRBK}, 6")
            e(f"s_lshl_b32 s{sT1}, s{sW}, 4")
            e(f"s_add_u32 s{sT0}, s{sT0}, s{sT1}")
            e(f"s_mul_i32 s{sT0}, s{sT0}, 1280")
            e(f"s_mul_i32 s{sT1}, s{sNB}, 160")
            e(f"s_add_u32 s62, s{sT0}, s{sT1}")
            e(f"v_mul_u32_u24 v22, 1280, v{vS}")
            e(f"v_lshl_add_u32 v23, v{vG}, 3, v22")
            e(f"v_lshl_add_u32 v22, v{vG}, 4, v22")
            vm.issue("xr", f"buffer_load_dwordx4 v[{XR}:{XR+3}], v22, s[{SRD_X}:{SRD_X+3}], s62 offen")
            vm.issue("xr", f"buffer_load_dwordx4 v[{XR+4}:{XR+7}], v22, s[{SRD_X}:{SRD_X+3}], s62 offen offset:64")
            vm.issue("xr", f"buffer_load_dwordx2 v[{XR+8}:{XR+9}], v23, s[{SRD_X}:{SRD_X+3}], s62 offen offset:128")
        if p < 20:
            pw, W, pa, A_ = step_loads(p)
            e(pw); e(pa)
            for nt in range(5):
                for m in mf[4*nt:4*nt+4]: e(m)
                vm.issue(("s", p), W[nt])
            for x in A_: vm.issue(("s", p), x)
        else:
            for m in mf: e(m)
    e("s_nop 7")
    e("s_nop 1")
    e(f"s_mul_i32 s{sT0}, s{sW}, 5120")
    e(f"v_add_u32 v6, s{sT0}, v{vL16}")
    e(f"v_add_u32 v7, 40960, v6")
    for st in range(4):
        lab = g.newlab("K2_SK")
        e(f"s_cmp_eq_u32 s{sW}, {st}")
        e(f"s_cbranch_scc1 {lab}")
        for nt in range(5):
            c = aacc(nt, st)
            e(f"ds_write_b128 v{6 + (st >> 1)}, a[{c}:{c+3}] offset:{(st & 1)*20480 + nt*1024}")
        g.lab(lab)
    OWN = 64
    for st in range(4):
        lab = g.newlab("K2_OW")
        e(f"s_cmp_eq_u32 s{sW}, {st}")
        e(f"s_cbranch_scc0 {lab}")
        for nt in range(5):
            for r in range(4):
                e(f"v_accvgpr_read_b32 v{OWN+4*nt+r}, a{aacc(nt, st)+r}")
        g.lab(lab)
    e("s_waitcnt lgkmcnt(0)")
    e("s_barrier")
    e(f"s_mul_i32 s{sT0}, s{sW}, 20480")
    e(f"v_add_u32 v6, s{sT0}, v{vL16}")
    RD = 96
    for k in range(1, 4):
        e(f"s_add_u32 s{sT1}, s{sW}, {k}")
        e(f"s_and_b32 s{sT1}, s{sT1}, 3")
        e(f"s_mul_i32 s{sT1}, s{sT1}, 5120")
        e(f"v_add_u32 v7, s{sT1}, v6")
        for nt in range(5):
            r = RD + (k - 1) * 20 + 4 * nt
            e(f"ds_read_b128 v[{r}:{r+3}], v7 offset:{nt*1024}")
    vm.wait(["xr"], "lgkmcnt(0)")
    for k in range(3):
        for q in range(0, 20, 2):
            e(f"v_pk_add_f32 v[{OWN+q}:{OWN+q+1}], v[{OWN+q}:{OWN+q+1}], v[{RD+20*k+q}:{RD+20*k+q+1}]")
    for nt in range(5):
        for h2 in range(2):
            xr = XR + 2 * nt + h2
            a = OWN + 4 * nt + 2 * h2
            e(f"v_lshlrev_b32 v8, 16, v{xr}")
            e(f"v_and_b32 v9, 0xffff0000, v{xr}")
            e(f"v_pk_add_f32 v[{a}:{a+1}], v[{a}:{a+1}], v[8:9]")
            e(f"v_cvt_pk_bf16_f32 v{48+2*nt+h2}, v{a}, v{a+1}")
    e(f"buffer_store_dwordx4 v[48:51], v22, s[{SRD_OUT}:{SRD_OUT+3}], s62 offen")
    e(f"buffer_store_dwordx4 v[52:55], v22, s[{SRD_OUT}:{SRD_OUT+3}], s62 offen offset:64")
    e(f"buffer_store_dwordx2 v[56:57], v23, s[{SRD_OUT}:{SRD_OUT+3}], s62 offen offset:128")
    g.lab("K2_END")
    e("s_endpgm")
    return g.text()

if __name__ == "__main__":
    print(gen_k2())
```

```python
import sys
from gen_common import *
import gen_k1, gen_k2
HDR = open("parallel_sum__linear_kernel_hedgehog__dense_activation_relu__prompt.s.ref").read().split("; Override")[0]
def full():
    s = HDR
    s += f"; @launch kernel=hh1_kernel grid=(256,1,1) block=(512,1,1) lds={gen_k1.LDS1}\n"
    s += f"; @launch kernel=hh2_kernel grid=(256,1,1) block=(256,1,1) lds={gen_k2.LDS2}\n"
    s += '.amdgcn_target "amdgcn-amd-amdhsa--gfx950"\n.text\n'
    s += gen_k1.gen_k1() + gen_k2.gen_k2()
    s += '.section .rodata,"a"\n' + kd("hh1_kernel", 256, 96, 256) + kd("hh2_kernel", 512, 96, 256)
    return s
if __name__ == "__main__":
    out = sys.argv[1] if len(sys.argv) > 1 else "parallel_sum__linear_kernel_hedgehog__dense_activation_relu__prompt.s"
    open(out, "w").write(full())
    print("wrote", out)
```
